```python
import torch

def _softmax(x, axis=-1):
    return torch.softmax(x, dim=axis)

def _gelu(x):
    return torch.nn.functional.gelu(x, approximate='tanh')

def _silu(x):
    return torch.nn.functional.silu(x)

def _sigmoid(x):
    return torch.sigmoid(x)

def _layernorm(x, axis=-1, eps=1e-05):
    m = x.mean(dim=axis, keepdim=True)
    v = x.var(dim=axis, keepdim=True, unbiased=False)
    return (x - m) / torch.sqrt(v + eps)

def _scatter_add(tgt, idx, src, axis=0):
    return tgt.clone().index_add_(axis, idx, src)

def _segment_sum(src, seg, n):
    out = torch.zeros((n,) + src.shape[1:], dtype=src.dtype)
    return out.index_add_(0, seg, src)

def _pad(x, pw):
    flat = tuple((v for pair in reversed(pw) for v in pair))
    return torch.nn.functional.pad(x, flat)
kernel_name = 'adaLN_cond__mha_block_cached__dense_activation_silu__prompt'

def setup_inputs():

    _w = lambda a: (lambda t: t.to(torch.bfloat16) if t.is_floating_point() else t)(torch.as_tensor(a))

    def _A_setup():
        B, Sq, D = (1, 2048, 448)
        H, Sk, Dh = (16, 2048, 256)
        return {'x': _w((lambda *s: torch.randn(*s, dtype=torch.bfloat16) * 0.1)(B, Sq, D)), 'k_cache': _w((lambda *s: torch.randn(*s, dtype=torch.bfloat16) * 0.8)(B, H, Sk, Dh)), 'v_cache': _w((lambda *s: torch.randn(*s, dtype=torch.bfloat16) * 3.2)(B, H, Sk, Dh)), 'wq': _w((lambda *s: torch.randn(*s, dtype=torch.bfloat16) * 0.8)(D, H * Dh) * D ** (-0.5)), 'wo': _w((lambda *s: torch.randn(*s, dtype=torch.bfloat16) * 3.2)(H * Dh, D) * (H * Dh) ** (-0.5))}
    _A_in = _A_setup()

    def _B_setup():
        B, S, D, F = (1, 2048, 448, 1792)
        return {'x': _w((lambda *s: torch.randn(*s, dtype=torch.bfloat16) * 0.1)(B, S, D)), 'w1': _w((lambda *s: torch.randn(*s, dtype=torch.bfloat16) * 3.2)(D, F) * D ** (-0.5)), 'w2': _w((lambda *s: torch.randn(*s, dtype=torch.bfloat16) * 3.2)(F, D) * F ** (-0.5))}
    _B_in = _B_setup()
    return {'A_x': _A_in['x'], 'A_k_cache': _A_in['k_cache'], 'A_v_cache': _A_in['v_cache'], 'A_wq': _A_in['wq'], 'A_wo': _A_in['wo'], 'B_x': _B_in['x'], 'B_w1': _B_in['w1'], 'B_w2': _B_in['w2'], 'c': _w((lambda *s: torch.randn(*s, dtype=torch.bfloat16) * 0.1)(1, 448) * 8.0), 'w_mod': _w((lambda *s: torch.randn(*s, dtype=torch.bfloat16) * 0.1)(448, 6 * 448) * 448 ** (-0.5) * 8.0)}

def reference(A_x, A_k_cache, A_v_cache, A_wq, A_wo, B_x, B_w1, B_w2, c, w_mod):

    def _A_ref(x, k_cache, v_cache, wq, wo):
        B, Sq, D = x.shape
        H, Dh = (16, 256)
        q = (lambda x, *d: x.permute(*d))((x @ wq).reshape(B, Sq, H, Dh), 0, 2, 1, 3)
        scores = torch.einsum('bhqd,bhkd->bhqk', q, k_cache) * Dh ** (-0.5)
        p = _softmax(scores, axis=-1)
        o = torch.einsum('bhqk,bhkd->bhqd', p, v_cache)
        return (lambda x, *d: x.permute(*d))(o, 0, 2, 1, 3).reshape(B, Sq, H * Dh) @ wo

    def _B_ref(x, w1, w2):
        h = torch.einsum('bsd,df->bsf', x, w1)
        h = _silu(h)
        out = torch.einsum('bsf,fd->bsd', h, w2)
        return out
    x = A_x
    mod = (_silu(c) @ w_mod).reshape(c.shape[0], 6, 1, -1)
    sa, ca, ga, sb, cb, gb = (mod[:, 0].clone(), mod[:, 1].clone(), mod[:, 2].clone(), mod[:, 3].clone(), mod[:, 4].clone(), mod[:, 5].clone())
    h = _layernorm(x, axis=-1) * (1 + ca) + sa
    x = x + ga * _A_ref(h, A_k_cache, A_v_cache, A_wq, A_wo)
    h = _layernorm(x, axis=-1) * (1 + cb) + sb
    x = x + gb * _B_ref(h, B_w1, B_w2)
    return x
```

```python
import struct

def f32bits(x):
    return struct.unpack("<I", struct.pack("<f", x))[0]
def fhex(x):
    return "0x%08x" % f32bits(x)

def vr(a, n=1):
    return "v%d" % a if n == 1 else "v[%d:%d]" % (a, a + n - 1)
def ar(a, n=1):
    return "a%d" % a if n == 1 else "a[%d:%d]" % (a, a + n - 1)
def sr(a, n=1):
    return "s%d" % a if n == 1 else "s[%d:%d]" % (a, a + n - 1)

class Item:
    __slots__ = ("text", "kind", "prod", "needs", "mark")
    def __init__(self, text, kind="x", prod=None, needs=(), mark=None):
        self.text = text
        self.kind = kind
        self.prod = prod
        self.needs = tuple(needs)
        self.mark = mark

class Prog:
    def __init__(self):
        self.items = []
        self.uid = 0
    def newid(self, tag="i"):
        self.uid += 1
        return "%s%d" % (tag, self.uid)
    def e(self, text, needs=()):
        self.items.append(Item(text, "x", None, needs))
    def lds(self, text, prod=None, needs=()):
        prod = prod or self.newid("l")
        self.items.append(Item(text, "lds", prod, needs))
        return prod
    def vm(self, text, prod=None, needs=()):
        prod = prod or self.newid("m")
        self.items.append(Item(text, "vm", prod, needs))
        return prod
    def mark(self, name):
        self.items.append(Item("", "mark", None, (), name))
    def drain(self, text):
        self.items.append(Item(text, "drain"))
    def add(self, it):
        self.items.append(it)

    def resolve(self):
        lq, vq = [], []
        out = []
        maxl = maxv = 0
        for it in self.items:
            if it.kind == "mark":
                out.append((None, it.mark)); continue
            wl = wv = None
            for n in it.needs:
                if n in lq:
                    k = len(lq) - 1 - lq.index(n)
                    wl = k if wl is None else min(wl, k)
                elif n in vq:
                    k = len(vq) - 1 - vq.index(n)
                    wv = k if wv is None else min(wv, k)
            if it.kind == "lds" and len(lq) >= 15:
                wl = 14 if wl is None else min(wl, 14)
            if it.kind == "vm" and len(vq) >= 63:
                wv = 62 if wv is None else min(wv, 62)
            if wl is not None or wv is not None:
                parts = []
                if wv is not None:
                    wv = min(wv, 63)
                    parts.append("vmcnt(%d)" % wv); vq = vq[len(vq) - wv:] if wv else []
                if wl is not None:
                    wl = min(wl, 15)
                    parts.append("lgkmcnt(%d)" % wl); lq = lq[len(lq) - wl:] if wl else []
                out.append(("s_waitcnt " + " ".join(parts), None))
            if it.kind == "drain":
                if "vmcnt(0)" in it.text: vq = []
                if "lgkmcnt(0)" in it.text: lq = []
            out.append((it.text, None))
            if it.kind == "lds":
                lq.append(it.prod); maxl = max(maxl, len(lq))
            elif it.kind == "vm":
                vq.append(it.prod); maxv = max(maxv, len(vq))
        self.maxl, self.maxv = maxl, maxv
        return out

def fold_loop(res, name, ncopies):
    idx = {m: i for i, (t, m) in enumerate(res) if m}
    bodies = []
    for c in range(ncopies):
        b, e = idx["%s:b%d" % (name, c)], idx["%s:e%d" % (name, c)]
        bodies.append([t for t, m in res[b + 1:e] if t is not None])
    for c in range(1, ncopies):
        if bodies[c] != bodies[0]:
            for i, (x, y) in enumerate(zip(bodies[0], bodies[c])):
                if x != y:
                    print("loop copy mismatch at", i, "\n  ", bodies[0][max(0,i-3):i+3], "\n  ", bodies[c][max(0,i-3):i+3])
                    break
            raise AssertionError("loop copies differ (%d vs %d lines)" % (len(bodies[0]), len(bodies[c])))
    b0, e0 = idx["%s:b0" % name], idx["%s:e0" % name]
    eL = idx["%s:e%d" % (name, ncopies - 1)]
    return res[:e0 + 1] + res[eL + 1:]

def render(res):
    lines = []
    for t, m in res:
        if t is None:
            lines.append("    ; ---- %s" % m)
        elif t.endswith(":"):
            lines.append(t)
        else:
            lines.append("    " + t)
    return "\n".join(lines) + "\n"

def kernel_text(name, body, nvgpr, accum_offset, nsgpr=96):
    return (".globl %s\n.p2align 8\n.type %s,@function\n%s:\n" % (name, name, name)) + body + "    s_endpgm\n"

def kernel_desc(name, nvgpr, accum_offset, nsgpr=100):
    return (""".amdhsa_kernel %s
  .amdhsa_next_free_vgpr %d
  .amdhsa_next_free_sgpr %d
  .amdhsa_accum_offset %d
  .amdhsa_group_segment_fixed_size 0
  .amdhsa_kernarg_size 104
  .amdhsa_user_sgpr_count 2
  .amdhsa_user_sgpr_kernarg_segment_ptr 1
  .amdhsa_system_sgpr_workgroup_id_x 1
.end_amdhsa_kernel
""" % (name, nvgpr, nsgpr, accum_offset))

class Op:
    __slots__ = ("item", "cost", "earliest", "deadline")
    def __init__(self, item, cost=4, earliest=0, deadline=10**9):
        self.item, self.cost, self.earliest, self.deadline = item, cost, earliest, deadline

class Sched:
    def __init__(self, prog, lookahead, budget=24):
        self.p = prog
        self.L = lookahead
        self.budget = budget
        self.mfma = []
        self.reads = []
        self.head = {}
        self.pre = {}
        self.marks_after_reads = {}
        self.streams = []
        self.gapmark = {}
    def n(self):
        return len(self.mfma)
    def add_mfma(self, text, reads, needs=()):
        self.mfma.append(Item(text, "x", None, needs))
        self.reads.append(reads)
        return len(self.mfma) - 1
    def add_head(self, gap, item, cost=4):
        self.head.setdefault(gap, []).append((item, cost))
    def add_pre(self, slot, item):
        self.pre.setdefault(slot, []).append(item)
    def add_stream(self, ops):
        self.streams.append(list(ops))
    def emit(self, read_cost=4):
        p = self.p
        n = self.n()
        heads = [0] * len(self.streams)
        self.load = {}
        for g in range(-1, n):
            if g >= 0:
                for it in self.pre.get(g, []):
                    p.add(it)
                p.add(self.mfma[g])
            used = 2
            for it in self.gapmark.get(g, []):
                p.add(it)
            if g == -1:
                rd_slots = range(0, min(self.L, n))
                for s in rd_slots:
                    for it, c in self.head.get(s - self.L, []):
                        p.add(it)
                    if s < self.L - 1 or True:
                        if s - self.L < -1 or s - self.L == -1:
                            for r in self.reads[s]:
                                p.add(r)
            else:
                for it, c in self.head.get(g, []):
                    p.add(it); used += c
                s = g + self.L
                if s < n:
                    for r in self.reads[s]:
                        p.add(r); used += read_cost
            def take(si):
                op = self.streams[si][heads[si]]
                heads[si] += 1
                p.add(op.item)
                return op.cost
            for si, st in enumerate(self.streams):
                last = -1
                for j in range(heads[si], len(st)):
                    if st[j].deadline <= g:
                        last = j
                while heads[si] <= last:
                    assert st[heads[si]].earliest <= g, ("earliest>deadline", st[heads[si]].item.text, g)
                    used += take(si)
            while True:
                best = None
                for si, st in enumerate(self.streams):
                    if heads[si] < len(st):
                        op = st[heads[si]]
                        if op.earliest <= g and used + op.cost <= self.budget:
                            dl = min(o.deadline for o in st[heads[si]:heads[si] + 64])
                            if best is None or dl < best[0]:
                                best = (dl, si)
                if best is None:
                    break
                used += take(best[1])
            self.load[g] = used
        for si, st in enumerate(self.streams):
            while heads[si] < len(st):
                p.add(st[heads[si]].item); heads[si] += 1

class Frag:
    __slots__ = ("idx", "reg", "reads", "first", "last", "lead", "pos", "pre", "ids", "rpos")

class Sched2:
    def __init__(self, prog, lead, budget, pool_base, npool, gran=2, wait_cost=1):
        self.p, self.lead, self.budget = prog, lead, budget
        self.pool_base, self.npool, self.gran, self.wait_cost = pool_base, npool, gran, wait_cost
        self.mf, self.fr = [], []
        self.head, self.pre, self.streams = {}, {}, []
        self.fence = []
    def n(self):
        return len(self.mf)
    def frag(self, read_texts_fn, extra_lead=0):
        f = Frag()
        f.idx = len(self.fr)
        f.reg = self.pool_base + 4 * (f.idx % self.npool)
        f.reads = [Item(t, "lds", self.p.newid("r")) for t in read_texts_fn(f.reg)]
        f.ids = [r.prod for r in f.reads]
        f.first = f.last = None
        f.lead = self.lead + extra_lead
        f.pre = []
        self.fr.append(f)
        return f
    def mfma(self, text, f, needs=()):
        i = len(self.mf)
        self.mf.append(Item(text, "x", None, needs))
        if f.first is None:
            f.first = i
        f.last = i
        return i
    def add_head(self, gap, item, cost=4):
        self.head.setdefault(gap, []).append((item, cost))
    def add_pre(self, slot, item):
        self.pre.setdefault(slot, []).append(item)
    def add_stream(self, ops):
        self.streams.append(list(ops))
    def place(self, minlead=6):
        prev = -10**9
        for f in self.fr:
            pos = f.first - f.lead
            if f.idx >= self.npool:
                pos = max(pos, self.fr[f.idx - self.npool].last + 1)
            f.rpos = []
            for i in range(len(f.reads)):
                want = max(pos, prev + 1)
                if want > f.first - minlead:
                    want = max(pos, prev)
                want = max(want, -1)
                assert want < f.first, ("fragment pool too small", f.idx)
                f.rpos.append(want)
                prev = want
            f.pos = f.rpos[0]
        for f in self.fr:
            if f.idx % self.gran == 0:
                nd = []
                for k in range(f.idx, min(len(self.fr), f.idx + self.gran)):
                    if self.fr[k].rpos[-1] < f.first - 4 or k == f.idx:
                        nd += self.fr[k].ids
                self.mf[f.first].needs += tuple(nd)
            self.mf[f.first].needs += tuple(f.ids)
    def emit(self):
        p, n = self.p, self.n()
        heads = [0] * len(self.streams)
        byg = {}
        for f in self.fr:
            for i, r in enumerate(f.reads):
                byg.setdefault(f.rpos[i], []).append((f, i))
        self.load = {}
        for g in range(-1, n):
            if g >= 0:
                for it in self.pre.get(g, []):
                    p.add(it)
                p.add(self.mf[g])
            used = self.wait_cost
            for it, c in self.head.get(g, []):
                p.add(it); used += c
            for f, i in byg.get(g, []):
                if i == 0:
                    for it, c in f.pre:
                        p.add(it); used += c
                p.add(f.reads[i]); used += 4
            def take(si):
                op = self.streams[si][heads[si]]
                heads[si] += 1
                p.add(op.item)
                return op.cost
            for si, st in enumerate(self.streams):
                last = -1
                for j in range(heads[si], len(st)):
                    if st[j].deadline <= g:
                        last = j
                while heads[si] <= last:
                    assert st[heads[si]].earliest <= g, ("earliest>deadline", st[heads[si]].item.text, g)
                    used += take(si)
            while True:
                best = None
                for si, st in enumerate(self.streams):
                    if heads[si] < len(st):
                        op = st[heads[si]]
                        if op.earliest <= g and used + op.cost <= self.budget:
                            dl = min(o.deadline for o in st[heads[si]:heads[si] + 64])
                            if best is None or dl < best[0]:
                                best = (dl, si)
                if best is None:
                    break
                used += take(best[1])
            self.load[g] = used
        for si, st in enumerate(self.streams):
            while heads[si] < len(st):
                p.add(st[heads[si]].item); heads[si] += 1
        for it in self.pre.get(n, []):
            p.add(it)

def spread_ops(items_costs, e, dl):
    tot = sum(c for _, c in items_costs)
    ops, acc = [], 0
    span = max(dl - e, 0)
    for it, c in items_costs:
        t = e + (acc * span) // max(tot, 1)
        acc += c
        t2 = e + (acc * span) // max(tot, 1)
        ops.append(Op(it, c, earliest=t, deadline=min(dl, max(t2 + 2, t))))
    return ops
```

```python
import sys
from asmlib import *

NAME = "adaLN_cond__mha_block_cached__dense_activation_silu__prompt"
KN = NAME + "_kernel"
WS_PRM1 = 0
WS_GA, WS_SB, WS_C1B, WS_GB = 4096, 6144, 8192, 10240
WS_FLG = 0x4000
WS_H2 = 0x200000
WS_P1 = 0x800000
WS_P2 = 0x2400000
WS_STAMP = 0x8000000
WS_SIZE = 268435456
ACT = 1835008
LOG2E = 1.4426950408889634
QSCALE = LOG2E / 16.0
BIAS = 4096
GSTR = 4224
SLOT = 4 * GSTR
MF = "v_mfma_f32_16x16x32_bf16"
OOB = 0x7ffffff0

class Cfg:
    LEAD = 10
    GRAN = 2
    BUDGET = 9
    WAITC = 1
    DMA_COST = 4
    R = 9
    NPOOL = 16
    THR = 1024.0
    stamps = False
    VERBOSE = True
    ST = " sc1"
    LD = " sc1"
    CODEPF = True
    SM_E = 3
    SM_SPAN = None
    MINLEAD = 6
    SSET = ("start", "gemv", "stats", "xh", "modok", "q0", "loop0", "loop1", "woend", "r1flag", "h2flag", "r2flag")
cfg = Cfg()

def I(text, needs=()):
    return Item(text, "x", None, needs)
def multi(*lines):
    return "\n    ".join(lines)

def srd(p, d, lo, hi, size):
    p.e("s_mov_b32 s%d, s%d" % (d, lo))
    p.e("s_and_b32 s%d, s%d, 0xffff" % (d + 1, hi))
    p.e("s_mov_b32 s%d, 0x%x" % (d + 2, size))
    p.e("s_mov_b32 s%d, 0x20000" % (d + 3))
def bf16r(p, dst, src):
    p.e("v_cvt_pk_bf16_f32 v%d, v%d, v%d" % (dst, src, src))
    p.e("v_lshlrev_b32 v%d, 16, v%d" % (dst, dst))
def unpack(p, lo, hi, src):
    p.e("v_lshlrev_b32 v%d, 16, v%d" % (lo, src))
    p.e("v_and_b32 v%d, 0xffff0000, v%d" % (hi, src))
def round_pairs(p, regs, tmps):
    n = len(regs) // 2
    for i in range(n):
        p.e("v_cvt_pk_bf16_f32 v%d, v%d, v%d" % (tmps[i], regs[2 * i], regs[2 * i + 1]))
    for i in range(n):
        unpack(p, regs[2 * i], regs[2 * i + 1], tmps[i])
def swap_reduce(emit, op, vals, tmps, kind):
    ins = "v_permlane16_swap_b32" if kind == 16 else "v_permlane32_swap_b32"
    for v, t in zip(vals, tmps):
        emit("v_mov_b32 v%d, v%d" % (t, v))
    if len(vals) < 3:
        emit("s_nop 1")
    for v, t in zip(vals, tmps):
        emit("%s v%d, v%d" % (ins, v, t))
    if len(vals) < 3:
        emit("s_nop 1")
    for v, t in zip(vals, tmps):
        emit("%s v%d, v%d, v%d" % (op, v, v, t))
def dpp_add(emit, vals, ctl):
    if len(vals) < 3:
        emit("s_nop 1")
    for v in vals:
        emit("v_add_f32_dpp v%d, v%d, v%d %s row_mask:0xf bank_mask:0xf" % (v, v, v, ctl))
def ln_finish(p, vmean, vvar, vr_):
    bf16r(p, vmean, vmean)
    bf16r(p, vvar, vvar)
    p.e("v_add_f32 v%d, %s, v%d" % (vvar, fhex(1e-5), vvar))
    bf16r(p, vvar, vvar)
    p.e("v_sqrt_f32 v%d, v%d" % (vvar, vvar))
    p.e("s_nop 0")
    bf16r(p, vvar, vvar)
    p.e("v_rcp_f32 v%d, v%d" % (vr_, vvar))
    p.e("s_nop 0")

class Ring:
    def __init__(self, p, sc, s_rp, s_end, s_start):
        self.p, self.sc = p, sc
        self.tiles = []
        self.s_rp, self.s_end, self.s_start = s_rp, s_end, s_start
    def add(self, f0, last, dma, setup, addr, newbar, dma_dl=None):
        self.tiles.append(dict(f0=f0, last=last, dma=dma, setup=setup, addr=addr, newbar=newbar, ids=[], dma_dl=dma_dl))
    def dma_items(self, t):
        T = self.tiles[t]
        out, lines = [], []
        if t > 0:
            out.append((I(multi("s_add_u32 m0, m0, %d" % SLOT, "s_cmp_ge_u32 m0, s%d" % self.s_end,
                                "s_cselect_b32 m0, s%d, m0" % self.s_start)), 12))
        out.append((I(multi(*T["setup"])), 4 * len(T["setup"])))
        for d in T["dma"]:
            pid = self.p.newid("d")
            T["ids"].append(pid)
            out.append((Item(d, "vm", pid), cfg.DMA_COST))
        return out
    def finish(self, ninit, first_needs=(), hard_dl=()):
        sc = self.sc
        n = len(self.tiles)
        nxt = ninit
        bars = [t for t in range(n) if self.tiles[t]["newbar"]]
        plan = []
        for bi, t in enumerate(bars):
            gb = self.tiles[t]["f0"].pos
            gnext = self.tiles[bars[bi + 1]]["f0"].pos if bi + 1 < len(bars) else sc.n() - 1
            for h in hard_dl:
                if gb < h <= gnext:
                    gnext = h
            freed = max([k for k in range(n) if self.tiles[k]["last"] <= gb], default=-1)
            lim = min(n - 1, freed + cfg.R)
            rel = list(range(nxt, lim + 1))
            nxt = max(nxt, lim + 1)
            plan.append((t, gb, gnext, rel))
        for (t, gb, gnext, rel) in plan:
            ic = []
            for r in rel:
                ic += self.dma_items(r)
            if ic:
                sc.add_stream(spread_ops(ic, gb + 1 if gb + 1 <= gnext - 1 else gb, max(gnext - 2, gb)))
        for t in range(n):
            T = self.tiles[t]
            if T["newbar"]:
                bi = bars.index(t)
                tend = bars[bi + 1] if bi + 1 < len(bars) else n
                needs = []
                for k in range(t, tend):
                    assert self.tiles[k]["ids"], ("tile not loaded", k)
                    needs += self.tiles[k]["ids"]
                if bi == 0:
                    needs += list(first_needs)
                T["f0"].pre.append((I("s_barrier", needs), 8))
            if t > 0:
                g = T["f0"].pos
                sc.add_stream([Op(I(multi("s_add_u32 s%d, s%d, %d" % (self.s_rp, self.s_rp, SLOT),
                                          "s_cmp_eq_u32 s%d, %d" % (self.s_rp, cfg.R * SLOT),
                                          "s_cselect_b32 s%d, 0, s%d" % (self.s_rp, self.s_rp))), 12,
                                  max(self.tiles[t - 1]["f0"].pos + 1, g - 8, -1), max(g - 1, -1))])
            for a in T["addr"]:
                T["f0"].pre.append((I(a), 4))

def gen():
    p = Prog()
    PRM_BASE = cfg.R * SLOT
    SCR = PRM_BASE + 4096
    LDS_BYTES = SCR + 1024
    NIT, NCOPY = 28, 3
    NKV = 64 - 2 * (NIT - NCOPY)
    FR = 128
    vLane, vKl, vRl, vY = 1, 2, 3, 4
    vKa, vRa, vYa = 8, 9, 10
    vOK, vOV, vOW, vOO = 14, 18, 22, 26
    vL, vTs, vRinv = 30, 32, 34
    vT0, vT1, vT2, vT3 = 36, 37, 38, 39
    vX1 = 40
    vPr, vSt0, vSt1, vL16, vChk = 48, 49, 50, 51, 52
    vRP, vRX, vRM, vRH = 53, 54, 55, 56
    QF = 64
    S = [128, 144]; E = 160; P = [176, 184]; NEGM = 192
    ACCQ = 128
    PSET = [64, 80]; HF = [96, 104]; HT = 112
    sK, sV, sWQ, sWO, sWS, sX, sOUT, sW1, sW2, sDB, sWM, sC = 4, 8, 12, 16, 20, 24, 28, 32, 36, 40, 44, 48
    sW, sHead, sQb, sRp, sEnd, sStart, sKo, sVo = 52, 53, 54, 55, 56, 57, 58, 59
    sCnt, sPo, sThr, sO, sTG, sU, sRet, sSpin, sOne, sOneH = 62, 63, 90, 91, 92, 93, 94, 96, 97, 3
    stamp_pool = [98, 100] + list(range(64, 90, 2))
    stamp_names = []
    def stamp(name):
        out = []
        kinds = ["s_memrealtime"] + (["s_memtime"] if name in ("loop0", "loop1") else [])
        for k in kinds:
            r = stamp_pool[len(stamp_names)]
            stamp_names.append(name + ("" if k == "s_memrealtime" else "_c"))
            out.append("%s s[%d:%d]" % (k, r, r + 1))
        return I(multi(*out))
    def want(name):
        return cfg.stamps and name in cfg.SSET
    def st(name):
        if want(name):
            p.add(stamp(name))

    p.e("s_cmp_ge_u32 s2, 256")
    p.e("s_cbranch_scc1 L_end")
    p.e("s_load_dwordx16 s[64:79], s[0:1], 0")
    p.e("s_load_dwordx8 s[80:87], s[0:1], 64")
    p.e("s_load_dwordx2 s[88:89], s[0:1], 96")
    st("start")
    p.e("v_and_b32 v%d, 63, v0" % vLane)
    p.e("v_lshrrev_b32 v%d, 6, v0" % vT0)
    p.e("s_and_b32 s%d, s2, 7" % sHead)
    p.e("s_lshl_b32 s%d, s%d, 1" % (sHead, sHead))
    p.e("s_bfe_u32 s60, s2, 0x10003")
    p.e("s_or_b32 s%d, s%d, s60" % (sHead, sHead))
    p.e("s_lshr_b32 s%d, s2, 4" % sQb)
    p.e("v_readfirstlane_b32 s%d, v%d" % (sW, vT0))
    G0 = 176
    p.e("v_lshrrev_b32 v%d, 1, v0" % vT1)
    p.e("v_and_b32 v%d, 1, v0" % vT2)
    p.e("v_mul_u32_u24 v%d, 5376, v%d" % (G0, vT1))
    p.e("v_lshl_add_u32 v%d, v%d, 4, v%d" % (G0, vT2, G0))
    p.e("v_lshlrev_b32 v%d, 1, v%d" % (G0 + 1, vT1))
    p.e("v_lshlrev_b32 v%d, 4, v%d" % (vL16, vLane))
    p.e("v_and_b32 v%d, 15, v%d" % (vT0, vLane))
    p.e("v_mul_u32_u24 v%d, 896, v%d" % (vT0, vT0))
    p.e("v_lshrrev_b32 v%d, 4, v%d" % (vT3, vLane))
    p.e("v_lshl_add_u32 v%d, v%d, 4, v%d" % (vSt0, vT3, vT0))
    p.e("v_add_u32 v%d, 14336, v%d" % (vSt1, vSt0))
    p.e("s_waitcnt lgkmcnt(0)")
    st("kargs")
    srd(p, sWM, 82, 83, 448 * 5376)
    srd(p, sC, 80, 81, 896)
    srd(p, sX, 64, 65, ACT)
    p.e("s_cmp_ge_u32 s2, 168")
    p.e("s_cbranch_scc1 L_nogemv1")
    for k in range(4):
        p.e("buffer_load_ushort v%d, v%d, s[%d:%d], 0 offen offset:%d" % (G0 + 4 + k, G0 + 1, sC, sC + 3, 256 * k))
    p.e("s_lshl_b32 s60, s2, 5")
    for k in range(4):
        p.e("buffer_load_dwordx4 %s, v%d, s[%d:%d], s60 offen" % (vr(G0 + 8 + 4 * k, 4), G0, sWM, sWM + 3))
        p.e("s_add_u32 s60, s60, %d" % (128 * 5376))
    p.e("L_nogemv1:")
    p.e("s_lshl_b32 s61, s%d, 2" % sQb)
    p.e("s_add_u32 s61, s61, s%d" % sW)
    p.e("s_mul_i32 s%d, s61, 28672" % sPo)
    XR = 64
    xids = []
    for s in range(14):
        for qb in range(2):
            xids.append(p.vm("buffer_load_dwordx4 %s, v%d, s[%d:%d], s%d offen offset:%d" %
                             (vr(XR + 8 * s + 4 * qb, 4), vSt1 if qb else vSt0, sX, sX + 3, sPo, 64 * s)))
    p.e("s_lshl_b32 s60, s%d, 20" % sHead)
    p.e("s_sub_u32 s60, s60, %d" % BIAS)
    p.e("s_subb_u32 s61, 0, 0")
    for (d, b) in ((sK, 66), (sV, 68)):
        p.e("s_add_u32 s%d, s%d, s60" % (b, b))
        p.e("s_addc_u32 s%d, s%d, s61" % (b + 1, b + 1))
        srd(p, d, b, b + 1, 1048576 + BIAS)
    p.e("s_sub_u32 s70, s70, %d" % BIAS)
    p.e("s_subb_u32 s71, s71, 0")
    srd(p, sWQ, 70, 71, 448 * 8192 + BIAS)
    p.e("s_mul_i32 s60, s%d, 229376" % sHead)
    p.e("s_add_u32 s72, s72, s60")
    p.e("s_addc_u32 s73, s73, 0")
    srd(p, sWO, 72, 73, 229376)
    srd(p, sWS, 88, 89, WS_SIZE)
    srd(p, sOUT, 84, 85, ACT)
    srd(p, sDB, 86, 87, 256)
    srd(p, sW1, 76, 77, 448 * 3584)
    p.e("s_min_u32 s61, s%d, 13" % sHead)
    p.e("s_mul_i32 s60, s61, 114688")
    p.e("s_add_u32 s78, s78, s60")
    p.e("s_addc_u32 s79, s79, 0")
    srd(p, sW2, 78, 79, 114688)
    p.e("s_cmp_lt_u32 s%d, 14" % sHead)
    p.e("s_cselect_b32 s%d, s%d, 0" % (sW1 + 2, sW1 + 2))
    p.e("s_cselect_b32 s%d, s%d, 0" % (sW2 + 2, sW2 + 2))
    p.e("v_lshrrev_b32 v%d, 5, v%d" % (vT0, vLane))
    p.e("v_lshlrev_b32 v%d, 15, v%d" % (vT0, vT0))
    p.e("v_and_b32 v%d, 31, v%d" % (vT1, vLane))
    p.e("v_lshl_add_u32 v%d, v%d, 4, v%d" % (vT0, vT1, vT0))
    p.e("s_lshl_b32 s60, s%d, 16" % sW)
    p.e("s_lshl_b32 s61, s%d, 9" % sHead)
    p.e("s_add_u32 s60, s60, s61")
    p.e("s_add_u32 s60, s60, %d" % BIAS)
    p.e("v_add_u32 v%d, s60, v%d" % (vOW, vT0))
    for j in range(1, 4):
        p.e("v_add_u32 v%d, %d, v%d" % (vOW + j, j * (8192 - 1056), vOW))
    p.e("s_mul_i32 s%d, s%d, %d" % (sStart, sW, GSTR))
    p.e("s_add_u32 s%d, s%d, %d" % (sEnd, sStart, cfg.R * SLOT))
    p.e("s_mov_b32 m0, s%d" % sStart)
    p.e("s_mov_b32 s%d, 0" % sRp)

    sc = Sched2(p, cfg.LEAD, cfg.BUDGET, FR, cfg.NPOOL, cfg.GRAN, cfg.WAITC)
    ring = Ring(p, sc, sRp, sEnd, sStart)
    def dma4(voff, srd_, soff, step):
        return ["buffer_load_dwordx4 v%d, s[%d:%d], s%d offen offset:%d lds" % (voff + j, srd_, srd_ + 3, soff, j * step) for j in range(4)]
    addrR = ["v_add_u32 v%d, s%d, v%d" % (vRa, sRp, vRl)]
    addrK = ["v_add_u32 v%d, s%d, v%d" % (vKa, sRp, vKl)]
    addrY = ["v_add_u32 v%d, s%d, v%d" % (vYa + i, sRp, vY + i) for i in range(4)]
    def ftr(vaddr, i0, i1, extra=0):
        return sc.frag(lambda r: ["ds_read_b64_tr_b16 %s, v%d offset:%d" % (ar(r, 2), vaddr, i0),
                                  "ds_read_b64_tr_b16 %s, v%d offset:%d" % (ar(r + 2, 2), vaddr, i1)], extra)
    def f128(vaddr, i0, extra=0):
        return sc.frag(lambda r: ["ds_read_b128 %s, v%d offset:%d" % (ar(r, 4), vaddr, i0)], extra)
    def mf(D, f, B, C, dfile="v", bfile="v", needs=()):
        R_ = vr if dfile == "v" else ar
        B_ = vr if bfile == "v" else ar
        return sc.mfma("%s %s, %s, %s, %s" % (MF, R_(D, 4), ar(f.reg, 4), B_(B, 4), "0" if C is None else R_(C, 4)), f, needs)
    def rtile(Dfn, Bfn, first, dfile):
        f0 = None
        for db in range(16):
            f = ftr(vRa, db * 32, db * 32 + 512)
            f0 = f0 or f
            for qb in range(2):
                D = Dfn(db, qb)
                mf(D, f, Bfn(qb), None if first else D, dfile=dfile)
        return f0
    for T in range(14):
        f0 = rtile(lambda db, qb: ACCQ + 8 * db + 4 * qb, lambda qb: HF[T & 1] + 4 * qb, T == 0, "v")
        ring.add(f0, sc.n() - 1, dma4(vOW, sWQ, sO, 1056), ["s_mov_b32 s%d, %d" % (sO, T * 262144)], addrR, T % 2 == 0)
    def Sreg(j, kb, qb):
        return S[j & 1] + 8 * kb + 4 * qb
    def ktile(j, useC):
        start = sc.n()
        f0 = None
        for kb in range(2):
            fs = [f128(vKa, kb * 2 * GSTR + 64 * s, extra=7 - s) for s in range(8)]
            f0 = f0 or fs[0]
            for qb in range(2):
                for s in range(8):
                    D = Sreg(j, kb, qb)
                    mf(D, fs[s], QF + 8 * s + 4 * qb, (NEGM + 4 * qb if useC else None) if s == 0 else D)
        setup = ["s_mov_b32 s%d, 0" % sKo] if j == 0 else ["s_add_u32 s%d, s%d, 16384" % (sKo, sKo)]
        ring.add(f0, sc.n() - 1, dma4(vOK, sK, sKo, 1056), setup, addrK, True)
        return start
    def vtile(j, newbar):
        start = sc.n()
        f0 = rtile(lambda db, qb: 8 * db + 4 * qb, lambda qb: P[j & 1] + 4 * qb, j == 0, "a")
        setup = ["s_mov_b32 s%d, 0" % sVo] if j == 0 else ["s_add_u32 s%d, s%d, 16384" % (sVo, sVo)]
        ring.add(f0, sc.n() - 1, dma4(vOV, sV, sVo, 1056), setup, addrR, newbar)
        return start
    blk_end = {}
    def ygroup(units, Dfn, Bfn, firstfn, bfile="v", needsfn=None):
        f0 = None
        nu = len(units)
        for nb in range(4):
            fs = [ftr(vYa + nb, gp * GSTR, gp * GSTR + 2048, extra=(nu - 1 - i)) for i, (gp, ks) in enumerate(units)]
            f0 = f0 or fs[0]
            for qb in range(2):
                for i, (gp, ks) in enumerate(units):
                    D = Dfn(nb, qb)
                    blk_end[D] = mf(D, fs[i], Bfn(ks, qb), None if firstfn(ks) else D, bfile=bfile,
                       needs=needsfn(ks, qb) if (needsfn and nb == 0) else ())
        return f0
    A0 = ktile(0, False)
    istart, bstart = {}, {}
    for k in range(NKV - 1):
        istart[k] = ktile(k + 1, True)
        bstart[k] = vtile(k, False)
    bstart[NKV - 1] = vtile(NKV - 1, True)
    WO0 = sc.n()
    OF = QF
    ACCO = [128, 160]
    def out_stream(acc, tmp, end, last, span):
        ic = []
        if last:
            ic.append((I("s_nop 7"), 4))
        for qb in range(2):
            for pp in range(2):
                t = tmp + 8 * qb + 4 * pp
                for h in range(2):
                    a = acc + 8 * (2 * pp + h) + 4 * qb
                    ic.append((I("v_cvt_pk_bf16_f32 v%d, v%d, v%d" % (t + 2 * h, a, a + 1)), 4))
                    ic.append((I("v_cvt_pk_bf16_f32 v%d, v%d, v%d" % (t + 2 * h + 1, a + 2, a + 3)), 4))
                ic.append((Item("buffer_store_dwordx4 %s, v%d, s[%d:%d], s%d offen offset:%d%s" %
                                (vr(t, 4), vSt1 if qb else vSt0, sWS, sWS + 3, sPo, 512 * pp, cfg.ST), "vm", p.newid("st")), 4))
        ic.append((I("s_add_u32 s%d, s%d, 1024" % (sPo, sPo)), 4))
        if last:
            sc.add_stream([Op(it, c, end, end) for it, c in ic])
        else:
            sc.add_stream(spread_ops(ic, end + 3, end + span))
    for j in range(7):
        for hh in range(2):
            f0 = ygroup([(i, 4 * hh + i) for i in range(4)], lambda nb, qb: ACCO[j & 1] + 8 * nb + 4 * qb,
                        lambda ks, qb: OF + 8 * ks + 4 * qb, lambda ks: ks == 0)
            ring.add(f0, sc.n() - 1, dma4(vOO, sWO, sO, 1024), ["s_mov_b32 s%d, %d" % (sO, hh * 114688 + j * 128)], addrY, hh == 1)
        out_stream(ACCO[j & 1], 192, sc.n() - 1, j == 6, 48)
    F1 = sc.n()
    ACC1, FF, ACC2 = 64, 128, [160, 192]
    hitems, hid = [], {}
    for s in range(14):
        for qb in range(2):
            it = Item("buffer_load_dwordx4 %s, v%d, s[%d:%d], s%d offen offset:%d%s" %
                      (ar(8 * s + 4 * qb, 4), vL16, sWS, sWS + 3, sO, (s & 1) * 2048 + qb * 1024, cfg.LD), "vm", p.newid("h"))
            hid[(s, qb)] = it.prod
            hitems.append(it)
    half_end = {}
    for T in range(7):
        f0 = None
        us = [(i, divmod(4 * T + i, 14)) for i in range(4)]
        for hf in sorted(set(u[1][0] for u in us)):
            units = [(gp, ks) for gp, (h_, ks) in us if h_ == hf]
            ff = ygroup(units, lambda nb, qb: ACC1 + 32 * hf + 8 * nb + 4 * qb, lambda ks, qb: 8 * ks + 4 * qb,
                        lambda ks: ks == 0, bfile="a", needsfn=lambda ks, qb: [hid[(ks, qb)]])
            f0 = f0 or ff
            half_end[hf] = sc.n() - 1
        if T == 0:
            setup = ["s_nop 0"]
        else:
            setup = ["s_add_u32 s%d, s%d, %d" % (sU, sU, 4 * 32 * 3584), "s_cmp_ge_u32 s%d, %d" % (sU, 14 * 32 * 3584),
                     "s_cselect_b32 s60, %d, 0" % (14 * 32 * 3584 - 128), "s_sub_u32 s%d, s%d, s60" % (sU, sU)]
        ring.add(f0, sc.n() - 1, dma4(vOW, sW1, sU, 1024), setup, addrY, T % 2 == 1)
    F2 = sc.n()
    f1_end = dict(blk_end)
    for j in range(7):
        f0 = ygroup([(i, i) for i in range(4)], lambda nb, qb: ACC2[j & 1] + 8 * nb + 4 * qb,
                    lambda ks, qb: FF + 8 * ks + 4 * qb, lambda ks: ks == 0)
        ring.add(f0, sc.n() - 1, dma4(vOO, sW2, sU, 1024), ["s_mov_b32 s%d, %d" % (sU, j * 128)], addrY, j % 2 == 0)
        out_stream(ACC2[j & 1], 224, sc.n() - 1, j == 6, 26)
    sc.place(cfg.MINLEAD)

    def init_tile(t):
        for it, c in ring.dma_items(t):
            p.add(it)
    init_tile(0); init_tile(1)
    st("issued")
    p.e("s_lshl_b32 s%d, s%d, 7" % (sTG, sQb))
    p.e("s_lshl_b32 s60, s%d, 2" % sHead)
    p.e("s_add_u32 s%d, s%d, s60" % (sTG, sTG))
    p.e("s_add_u32 s%d, s%d, 0x%x" % (sTG, sTG, WS_FLG))
    p.e("v_lshlrev_b32 v%d, 11, v%d" % (vT0, vLane))
    p.e("v_mov_b32 v%d, 0" % vT1)
    p.e("s_cmp_lg_u32 s%d, 0" % sW)
    p.e("s_cbranch_scc1 L_noz")
    p.e("s_mov_b64 exec, 7")
    p.e("buffer_store_dword v%d, v%d, s[%d:%d], s%d offen sc1" % (vT1, vT0, sWS, sWS + 3, sTG))
    p.e("s_mov_b64 exec, -1")
    p.e("L_noz:")
    p.e("v_and_b32 v%d, 3, v%d" % (vT0, vLane))
    p.e("v_bfe_u32 v%d, v%d, 2, 2" % (vT1, vLane))
    p.e("v_lshrrev_b32 v%d, 4, v%d" % (vT2, vLane))
    p.e("v_mul_u32_u24 v%d, %d, v%d" % (vRl, GSTR, vT2))
    p.e("v_mul_u32_u24 v%d, 1056, v%d" % (vT3, vT1))
    p.e("v_add_u32 v%d, v%d, v%d" % (vRl, vRl, vT3))
    p.e("v_lshl_add_u32 v%d, v%d, 3, v%d" % (vRl, vT0, vRl))
    p.e("v_lshrrev_b32 v%d, 2, v%d" % (vT3, vLane))
    p.e("v_lshlrev_b32 v%d, 7, v%d" % (vY, vT3))
    p.e("v_lshl_add_u32 v%d, v%d, 3, v%d" % (vY, vT0, vY))
    p.e("v_bfe_u32 v%d, v%d, 3, 2" % (vT3, vLane))
    p.e("v_lshl_add_u32 v%d, v%d, 5, v%d" % (vY, vT3, vY))
    for nb in range(1, 4):
        p.e("v_xor_b32 v%d, %d, v%d" % (vY + nb, 32 * nb, vY))
    p.e("v_bfe_u32 v%d, v%d, 3, 1" % (vT3, vLane))
    p.e("v_mul_u32_u24 v%d, %d, v%d" % (vKl, GSTR, vT3))
    p.e("v_mul_u32_u24 v%d, 1056, v%d" % (vT0, vT0))
    p.e("v_add_u32 v%d, v%d, v%d" % (vKl, vKl, vT0))
    p.e("v_lshl_add_u32 v%d, v%d, 4, v%d" % (vKl, vT2, vKl))
    p.e("v_bfe_u32 v%d, v%d, 2, 1" % (vT0, vLane))
    p.e("v_xor_b32 v%d, v%d, v%d" % (vT0, vT0, vT3))
    p.e("v_lshl_add_u32 v%d, v%d, 9, v%d" % (vKl, vT0, vKl))
    p.e("v_lshlrev_b32 v%d, 6, v%d" % (vPr, vT2))
    p.e("v_add_u32 v%d, %d, v%d" % (vPr, PRM_BASE, vPr))
    p.e("s_mov_b32 s%d, 0x3f803f80" % sOne)
    p.e("s_cmp_ge_u32 s2, 168")
    p.e("s_cbranch_scc1 L_nogemv2")
    nyounger = 28 + 8
    p.e("s_waitcnt vmcnt(%d)" % (nyounger + 4))
    st("cwait")
    C0, EX, W0, A_ = G0 + 4, G0 + 24, G0 + 8, G0 + 32
    for k in range(4): p.e("v_lshlrev_b32 v%d, 16, v%d" % (C0 + k, C0 + k))
    for k in range(4): p.e("v_mul_f32 v%d, %s, v%d" % (EX + k, fhex(-LOG2E), C0 + k))
    for k in range(4): p.e("v_exp_f32 v%d, v%d" % (EX + k, EX + k))
    for k in range(4): p.e("v_add_f32 v%d, 1.0, v%d" % (EX + k, EX + k))
    for k in range(4): p.e("v_rcp_f32 v%d, v%d" % (EX + k, EX + k))
    for k in range(4): p.e("v_mul_f32 v%d, v%d, v%d" % (C0 + k, C0 + k, EX + k))
    round_pairs(p, [C0 + k for k in range(4)], [EX, EX + 1])
    for k in range(4):
        p.e("s_waitcnt vmcnt(%d)" % (nyounger + 3 - k))
        for d in range(4):
            unpack(p, EX, EX + 1, W0 + 4 * k + d)
            if k == 0:
                p.e("v_mul_f32 v%d, v%d, v%d" % (A_ + 2 * d, C0, EX))
                p.e("v_mul_f32 v%d, v%d, v%d" % (A_ + 2 * d + 1, C0, EX + 1))
            else:
                p.e("v_fmac_f32 v%d, v%d, v%d" % (A_ + 2 * d, C0 + k, EX))
                p.e("v_fmac_f32 v%d, v%d, v%d" % (A_ + 2 * d + 1, C0 + k, EX + 1))
    st("wwait")
    AV = [A_ + i for i in range(8)]; TV = [A_ + 8 + i for i in range(8)]
    dpp_add(p.e, AV, "quad_perm:[2,3,0,1]")
    dpp_add(p.e, AV, "row_ror:4")
    dpp_add(p.e, AV, "row_ror:8")
    swap_reduce(p.e, "v_add_f32", AV, TV, 16)
    swap_reduce(p.e, "v_add_f32", AV, TV, 32)
    p.e("v_and_b32 v%d, 1, v0" % EX)
    p.e("v_lshlrev_b32 v%d, 5, v%d" % (EX, EX))
    p.e("s_lshl_b32 s60, s%d, 6" % sW)
    p.e("s_add_u32 s60, s60, %d" % SCR)
    p.e("v_add_u32 v%d, s60, v%d" % (EX, EX))
    p.e("ds_write_b128 v%d, %s" % (EX, vr(A_, 4)))
    p.e("ds_write_b128 v%d, %s offset:16" % (EX, vr(A_ + 4, 4)))
    p.e("s_waitcnt lgkmcnt(0)")
    st("gbar")
    p.e("s_barrier")
    p.e("s_cmp_lg_u32 s%d, 0" % sW)
    p.e("s_cbranch_scc1 L_nogemv2")
    p.e("v_and_b32 v%d, 15, v0" % EX)
    p.e("v_lshlrev_b32 v%d, 2, v%d" % (EX + 1, EX))
    p.e("v_add_u32 v%d, %d, v%d" % (EX + 1, SCR, EX + 1))
    for w in range(4):
        p.e("ds_read_b32 v%d, v%d offset:%d" % (A_ + w, EX + 1, 64 * w))
    p.e("s_mul_i32 s60, s2, 147")
    p.e("s_lshr_b32 s60, s60, 12")
    p.e("s_mul_i32 s61, s60, 28")
    p.e("s_sub_u32 s61, s2, s61")
    p.e("s_lshl_b32 s61, s61, 4")
    p.e("v_add_u32 v%d, s61, v%d" % (EX, EX))
    p.e("s_waitcnt lgkmcnt(0)")
    p.e("v_add_f32 v%d, v%d, v%d" % (A_, A_, A_ + 1))
    p.e("v_add_f32 v%d, v%d, v%d" % (A_ + 2, A_ + 2, A_ + 3))
    p.e("v_add_f32 v%d, v%d, v%d" % (A_, A_, A_ + 2))
    bf16r(p, A_, A_)
    p.e("s_cmp_eq_u32 s60, 1")
    p.e("s_cbranch_scc1 L_plus1")
    p.e("s_cmp_eq_u32 s60, 4")
    p.e("s_cbranch_scc0 L_noplus")
    p.e("L_plus1:")
    p.e("v_add_f32 v%d, 1.0, v%d" % (A_, A_))
    bf16r(p, A_, A_)
    p.e("L_noplus:")
    p.e("s_mov_b64 exec, 0xffff")
    p.e("s_cmp_ge_u32 s60, 2")
    p.e("s_cbranch_scc1 L_plain")
    p.e("v_mul_f32 v%d, %s, v%d" % (A_, fhex(QSCALE), A_))
    p.e("v_lshrrev_b32 v%d, 3, v%d" % (EX + 1, EX))
    p.e("v_lshlrev_b32 v%d, 6, v%d" % (EX + 1, EX + 1))
    p.e("v_and_b32 v%d, 7, v%d" % (EX, EX))
    p.e("v_lshl_add_u32 v%d, v%d, 2, v%d" % (EX + 1, EX, EX + 1))
    p.e("s_cmp_eq_u32 s60, 0")
    p.e("s_cselect_b32 s61, 32, 0")
    p.e("buffer_store_dword v%d, v%d, s[%d:%d], s61 offen sc1" % (A_, EX + 1, sWS, sWS + 3))
    p.e("s_mov_b64 exec, 1")
    p.e("v_mov_b32 v%d, 1" % EX)
    p.e("v_mov_b32 v%d, 0" % (EX + 1))
    p.e("s_waitcnt vmcnt(0)")
    p.e("buffer_atomic_add v%d, v%d, s[%d:%d], 0 offen sc1" % (EX, EX + 1, sDB, sDB + 3))
    p.e("s_branch L_gdone")
    p.e("L_plain:")
    p.e("s_lshl_b32 s61, s60, 11")
    p.e("v_lshlrev_b32 v%d, 2, v%d" % (EX + 1, EX))
    p.e("buffer_store_dword v%d, v%d, s[%d:%d], s61 offen sc1" % (A_, EX + 1, sWS, sWS + 3))
    p.e("L_gdone:")
    p.e("s_mov_b64 exec, -1")
    p.e("L_nogemv2:")
    st("gemv")
    for t in range(2, cfg.R):
        init_tile(t)
    if cfg.CODEPF:
        p.e("s_getpc_b64 s[60:61]")
        p.e("L_pc:")
        p.e("s_lshr_b32 s%d, s2, 3" % sCnt)
        p.e("s_lshl_b32 s%d, s%d, 2" % (sCnt, sCnt))
        p.e("s_add_u32 s%d, s%d, s%d" % (sCnt, sCnt, sW))
        p.e("s_and_b32 s%d, s%d, 15" % (sCnt, sCnt))
        p.e("s_lshl_b32 s%d, s%d, 13" % (sCnt, sCnt))
        p.e("v_lshlrev_b32 v%d, 7, v%d" % (vT0, vLane))
        p.e("v_add_u32 v%d, s%d, v%d" % (vT0, sCnt, vT0))
        p.e("v_min_u32 v%d, (L_end-L_pc)&0xfffffffc, v%d" % (vT0, vT0))
        p.vm("global_load_dword v%d, v%d, s[60:61]" % (vChk, vT0))
    st("issued2")
    p.e("s_lshl_b32 s60, s%d, 12" % sW)
    p.e("s_add_u32 s60, s60, %d" % BIAS)
    p.e("v_add_u32 v%d, s60, v%d" % (vOK, vL16))
    for j in range(1, 4):
        p.e("v_subrev_u32 v%d, %d, v%d" % (vOK + j, 32 * j, vOK))
    p.e("s_lshr_b32 s60, s%d, 1" % sW)
    p.e("s_xor_b32 s61, s60, s%d" % sW)
    p.e("s_and_b32 s61, s61, 1")
    p.e("s_lshl_b32 s60, s60, 3")
    p.e("s_add_u32 s60, s60, s61")
    p.e("s_lshl_b32 s60, s60, 9")
    p.e("s_add_u32 s60, s60, %d" % BIAS)
    p.e("v_lshrrev_b32 v%d, 5, v%d" % (vT0, vLane))
    p.e("v_lshlrev_b32 v%d, 13, v%d" % (vT0, vT0))
    p.e("v_and_b32 v%d, 31, v%d" % (vT1, vLane))
    p.e("v_lshl_add_u32 v%d, v%d, 4, v%d" % (vT0, vT1, vT0))
    p.e("v_add_u32 v%d, s60, v%d" % (vOV, vT0))
    for j in range(1, 4):
        p.e("v_subrev_u32 v%d, %d, v%d" % (vOV + j, 32 * j, vOV))
    def y_voffs(emit, dst, rs, with_wave):
        emit("v_lshrrev_b32 v%d, 3, v%d" % (vT0, vLane))
        if with_wave:
            emit("s_lshl_b32 s60, s%d, 5" % sW)
            emit("v_add_u32 v%d, s60, v%d" % (vT0, vT0))
        emit("v_mul_u32_u24 v%d, %d, v%d" % (vT0, rs, vT0))
        emit("v_bfe_u32 v%d, v%d, 1, 2" % (vT1, vLane))
        emit("v_lshrrev_b32 v%d, 4, v%d" % (dst, vLane))
        emit("v_xor_b32 v%d, v%d, v%d" % (vT1, vT1, dst))
        emit("v_lshl_add_u32 v%d, v%d, 5, v%d" % (vT0, vT1, vT0))
        emit("v_and_b32 v%d, 1, v%d" % (vT1, vLane))
        emit("v_lshl_add_u32 v%d, v%d, 4, v%d" % (dst, vT1, vT0))
        for j in range(1, 4):
            emit("v_add_u32 v%d, %d, v%d" % (dst + j, j * (8 * rs - 1024), dst))
    y_voffs(p.e, vOO, 896, True)
    p.e("s_mov_b32 s%d, %s" % (sThr, fhex(cfg.THR)))
    p.e("v_mov_b32 v%d, 0" % vL)
    p.e("v_mov_b32 v%d, 0" % (vL + 1))
    SM, SQ = [176, 177], [178, 179]
    for i in range(4):
        p.e("v_mov_b32 v%d, 0" % (176 + i))
    for s in range(14):
        for qb in range(2):
            for d in range(4):
                x = XR + 8 * s + 4 * qb + d
                p.e("v_dot2_f32_bf16 v%d, v%d, s%d, v%d" % (SM[qb], x, sOne, SM[qb]), needs=[xids[2 * s + qb]] if d == 0 else ())
                p.e("v_dot2_f32_bf16 v%d, v%d, v%d, v%d" % (SQ[qb], x, x, SQ[qb]))
    p.e("s_nop 2")
    st("stats")
    V4 = [176, 177, 178, 179]; T4 = [180, 181, 182, 183]
    swap_reduce(p.e, "v_add_f32", V4, T4, 16)
    swap_reduce(p.e, "v_add_f32", V4, T4, 32)
    RS_, NM = [184, 185], [186, 187]
    for qb in range(2):
        p.e("v_mul_f32 v%d, %s, v%d" % (SM[qb], fhex(1.0 / 448), SM[qb]))
        p.e("v_mul_f32 v%d, %s, v%d" % (SQ[qb], fhex(1.0 / 448), SQ[qb]))
        p.e("v_fma_f32 v%d, -v%d, v%d, v%d" % (SQ[qb], SM[qb], SM[qb], SQ[qb]))
        p.e("v_max_f32 v%d, 0, v%d" % (SQ[qb], SQ[qb]))
        ln_finish(p, SM[qb], SQ[qb], RS_[qb])
        p.e("v_mul_f32 v%d, v%d, v%d" % (NM[qb], SM[qb], RS_[qb]))
    for s in range(14):
        for qb in range(2):
            for d2 in range(2):
                tl = []
                for d in (2 * d2, 2 * d2 + 1):
                    x = XR + 8 * s + 4 * qb + d
                    lo, hi = 188 + 2 * (d & 1), 189 + 2 * (d & 1)
                    unpack(p, lo, hi, x)
                for d in (2 * d2, 2 * d2 + 1):
                    lo, hi = 188 + 2 * (d & 1), 189 + 2 * (d & 1)
                    p.e("v_fma_f32 v%d, v%d, v%d, -v%d" % (lo, lo, RS_[qb], NM[qb]))
                    p.e("v_fma_f32 v%d, v%d, v%d, -v%d" % (hi, hi, RS_[qb], NM[qb]))
                for d in (2 * d2, 2 * d2 + 1):
                    x = XR + 8 * s + 4 * qb + d
                    lo, hi = 188 + 2 * (d & 1), 189 + 2 * (d & 1)
                    p.e("v_cvt_pk_bf16_f32 v%d, v%d, v%d" % (x, lo, hi))
                for d in (2 * d2, 2 * d2 + 1):
                    x = XR + 8 * s + 4 * qb + d
                    p.e("v_accvgpr_write_b32 a%d, v%d" % (8 * s + 4 * qb + d, x))
    st("xh")
    def poll(tag, loads, cond, exec_mask):
        p.e("s_cmp_lg_u32 s%d, 0" % sW)
        p.e("s_cbranch_scc1 L_pd_%s" % tag)
        p.e("s_mov_b64 exec, 0x%x" % exec_mask)
        p.e("s_mov_b32 s%d, 400000" % sSpin)
        p.e("L_pl_%s:" % tag)
        for l in loads: p.e(l)
        p.e("s_waitcnt vmcnt(0)")
        for c in cond: p.e(c)
        p.e("s_cbranch_scc1 L_px_%s" % tag)
        p.e("s_sleep 1")
        p.e("s_sub_u32 s%d, s%d, 1" % (sSpin, sSpin))
        p.e("s_cmp_lg_u32 s%d, 0" % sSpin)
        p.e("s_cbranch_scc1 L_pl_%s" % tag)
        p.e("L_px_%s:" % tag)
        p.e("s_mov_b64 exec, -1")
        p.e("L_pd_%s:" % tag)
        p.e("s_barrier")
    p.e("v_mov_b32 v%d, 0" % vT0)
    poll("mod", ["buffer_load_dword v%d, v%d, s[%d:%d], 0 offen sc1" % (vT1, vT0, sDB, sDB + 3)],
         ["v_readfirstlane_b32 s60, v%d" % vT1, "s_cmp_ge_u32 s60, 56"], 1)
    st("modok")
    p.e("v_lshlrev_b32 v%d, 4, v0" % vT0)
    pl = p.vm("buffer_load_dwordx4 v[176:179], v%d, s[%d:%d], 0 offen sc1" % (vT0, sWS, sWS + 3))
    p.e("v_add_u32 v%d, %d, v%d" % (vT0, PRM_BASE, vT0))
    prm_w = p.lds("ds_write_b128 v%d, v[176:179]" % vT0, needs=[pl])
    p.e("s_cmp_lg_u32 s%d, 0" % sW)
    p.e("s_cbranch_scc1 L_noz2")
    p.e("s_mov_b64 exec, 1")
    p.e("v_mov_b32 v%d, 1" % vT1)
    p.e("v_mov_b32 v%d, 128" % vT2)
    p.e("buffer_atomic_add v%d, v%d, s[%d:%d], 0 offen sc1" % (vT1, vT2, sDB, sDB + 3))
    p.e("s_mov_b64 exec, -1")
    p.e("L_noz2:")

    pops, ops = [], []
    for s in range(14):
        ps = PSET[s & 1]
        pid = []
        ic = []
        for i in range(4):
            it = Item("ds_read_b128 %s, v%d offset:%d" % (vr(ps + 4 * i, 4), vPr, s * 256 + 16 * i), "lds", p.newid("pr"))
            pid.append(it.prod)
            ic.append((it, 4))
        e = 32 * s - 64 + 1
        pops += [Op(it, c, max(e, -1), max(e + 12, -1)) for it, c in ic]
        ic = []
        for qb in range(2):
            for d in range(4):
                x, lo, hi = HT + 4 * (d & 1), HT + 4 * (d & 1) + 1, HT + 4 * (d & 1) + 2
                ic.append((I("v_accvgpr_read_b32 v%d, a%d" % (x, 8 * s + 4 * qb + d), pid if (d == 0 and qb == 0) else ()), 4))
                ic.append((I("v_lshlrev_b32 v%d, 16, v%d" % (lo, x)), 4))
                ic.append((I("v_and_b32 v%d, 0xffff0000, v%d" % (hi, x)), 4))
                ic.append((I("v_fma_f32 v%d, v%d, v%d, v%d" % (lo, lo, ps + 2 * d, ps + 8 + 2 * d)), 4))
                ic.append((I("v_fma_f32 v%d, v%d, v%d, v%d" % (hi, hi, ps + 2 * d + 1, ps + 8 + 2 * d + 1)), 4))
                ic.append((I("v_cvt_pk_bf16_f32 v%d, v%d, v%d" % (HF[s & 1] + 4 * qb + d, lo, hi)), 4))
        if s == 0:
            ic.append((I("s_nop 1"), 4))
            ops += [Op(it, c, -1, -1) for it, c in ic]
        else:
            ops += spread_ops(ic, max(32 * s - 33, -1), 32 * s - 3)
    sc.add_stream(pops)
    sc.add_stream(ops)
    ops = []
    qend = 14 * 32
    for s in range(8):
        ic = []
        for qb in range(2):
            t = QF + 8 * s + 4 * qb
            X, Y = ACCQ + 16 * s + 4 * qb, ACCQ + 16 * s + 8 + 4 * qb
            ic.append("v_cvt_pk_bf16_f32 v%d, v%d, v%d" % (t, X, X + 1))
            ic.append("v_cvt_pk_bf16_f32 v%d, v%d, v%d" % (t + 2, Y, Y + 1))
            ic.append("v_cvt_pk_bf16_f32 v%d, v%d, v%d" % (t + 1, X + 2, X + 3))
            ic.append("v_cvt_pk_bf16_f32 v%d, v%d, v%d" % (t + 3, Y + 2, Y + 3))
        for ins in ("v_permlane32_swap_b32", "v_permlane16_swap_b32"):
            for qb in range(2):
                t = QF + 8 * s + 4 * qb
                ic.append("%s v%d, v%d" % (ins, t, t + 2))
                ic.append("%s v%d, v%d" % (ins, t + 1, t + 3))
        e = qend - 32 + 4 * s + 3 + 3
        if QF + 8 * s + 8 > HF[0] and QF + 8 * s < HF[1] + 8:
            e = max(e, qend - 1)
        dl = max(A0 + s - 3, e)
        if s < 1: dl = max(A0 - 3, e)
        ops += [Op(I(t), 4, e, dl) for t in ic]
        if dl > A0 + s - 3:
            ops.append(Op(I("s_nop 1"), 4, e, dl))
    sc.add_stream(ops)
    ic = []
    em = lambda t: ic.append((I(t), 4))
    y_voffs(em, vOW, 3584, False)
    em("v_and_b32 v%d, 15, v%d" % (vT0, vLane))
    em("v_lshrrev_b32 v%d, 3, v%d" % (vT1, vT0))
    em("v_mul_u32_u24 v%d, 7168, v%d" % (vSt0, vT1))
    em("v_and_b32 v%d, 7, v%d" % (vT0, vT0))
    em("v_lshl_add_u32 v%d, v%d, 6, v%d" % (vSt0, vT0, vSt0))
    em("v_lshrrev_b32 v%d, 4, v%d" % (vT0, vLane))
    em("v_lshl_add_u32 v%d, v%d, 4, v%d" % (vSt0, vT0, vSt0))
    em("v_add_u32 v%d, 14336, v%d" % (vSt1, vSt0))
    em(multi("s_mul_i32 s60, s%d, %d" % (sHead, ACT), "s_add_u32 s%d, s%d, s60" % (sPo, sPo), "s_add_u32 s%d, s%d, 0x%x" % (sPo, sPo, WS_P1)))
    em(multi("s_mul_i32 s%d, s%d, %d" % (sU, sW, 32 * 3584), "s_lshl_b32 s60, s%d, 8" % sHead, "s_add_u32 s%d, s%d, s60" % (sU, sU)))
    sc.add_stream(spread_ops(ic, A0 + 10, A0 + 28))

    def maxfix(emit, Sx):
        for qb in range(2):
            a, b = Sx + 4 * qb, Sx + 8 + 4 * qb
            d = vT0 + qb
            emit("v_max3_f32 v%d, v%d, v%d, v%d" % (d, a, a + 1, a + 2))
            emit("v_max3_f32 v%d, v%d, v%d, v%d" % (d, d, a + 3, b))
            emit("v_max3_f32 v%d, v%d, v%d, v%d" % (d, d, b + 1, b + 2))
            emit("v_max_f32 v%d, v%d, v%d" % (d, d, b + 3))
        swap_reduce(emit, "v_max_f32", [vT0, vT1], [vT2, vT3], 16)
        swap_reduce(emit, "v_max_f32", [vT0, vT1], [vT2, vT3], 32)
    def sm_list(j, sub):
        Sx, Px = S[j & 1], P[j & 1]
        order = [(kb, qb, r) for kb in range(2) for qb in range(2) for r in range(4)]
        o, pend = [], []
        def post(kb, qb, r):
            i = 8 * kb + 4 * qb + r
            if kb == 0 and r == 0:
                pass
            elif kb == 0 and r == 1:
                o.append(("v_add_f32 v%d, v%d, v%d" % (vTs + qb, E + i - 1, E + i), 4))
            else:
                o.append(("v_add_f32 v%d, v%d, v%d" % (vTs + qb, vTs + qb, E + i), 4))
            if r & 1:
                o.append(("v_cvt_pk_bf16_f32 v%d, v%d, v%d" % (Px + 4 * qb + 2 * kb + (r >> 1), E + i - 1, E + i), 4))
        for n_, (kb, qb, r) in enumerate(order):
            i = 8 * kb + 4 * qb + r
            if sub:
                o.append(("v_add_f32 v%d, v%d, v%d" % (Sx + i, Sx + i, NEGM + 4 * qb), 4))
            o.append(("v_exp_f32 v%d, v%d" % (E + i, Sx + i), 8))
            if n_ >= 1:
                post(*order[n_ - 1])
        o.append(("s_nop 0", 4))
        post(*order[-1])
        return o
    pre = []
    em = lambda t: pre.append(I(t))
    em("s_nop 7")
    maxfix(em, S[0])
    for qb in range(2):
        for i in range(4):
            em("v_sub_f32 v%d, 0, v%d" % (NEGM + 4 * qb + i, vT0 + qb))
    em("s_nop 1")
    for it in pre:
        sc.add_pre(istart[0], it)
    tramps = []
    for j in range(NKV):
        sdone = (A0 + 31) if j == 0 else istart[j - 1] + 31
        use = bstart[j]
        ic = [(I(t), c) for t, c in sm_list(j, j == 0)]
        if j > 0:
            ic.append((I("v_max_f32 v%d, v%d, v%d" % (vChk, vTs, vTs + 1)), 4))
            ic.append((I("v_cmp_lt_f32 vcc, s%d, v%d" % (sThr, vChk)), 4))
        if j == 0:
            e = istart[0]
        elif j == NKV - 1:
            e = sdone + 3
        else:
            e = sdone + cfg.SM_E
        dl = use - 3
        if cfg.SM_SPAN and 0 < j < NKV - 1:
            dl = min(dl, e + cfg.SM_SPAN)
        sc.add_stream(spread_ops(ic, e, dl))
        if j > 0:
            inloop = 2 <= j < 2 + 2 * NCOPY
            tag = ("lp%d" % (j & 1)) if inloop else ("p%d" % j)
            sc.add_pre(use, I("s_cbranch_vccnz L_tr_%s" % tag))
            sc.add_pre(use, I("L_bk_%s:" % tag))
            if (tag, j & 1) not in tramps:
                tramps.append((tag, j & 1))
        sc.add_head(use, I("v_add_f32 v%d, v%d, v%d" % (vL, vL, vTs)), 4)
        sc.add_head(use + 1, I("v_add_f32 v%d, v%d, v%d" % (vL + 1, vL + 1, vTs + 1)), 4)
    for c in range(NCOPY):
        b, e = istart[2 + 2 * c], istart[4 + 2 * c]
        sc.pre.setdefault(b, [])
        sc.pre[b] += [Item("", "mark", mark="loop:b%d" % c), I("L_loop:")]
        sc.pre.setdefault(e, [])
        sc.pre[e] = [I(multi("s_sub_u32 s%d, s%d, 1" % (sCnt, sCnt), "s_cmp_lg_u32 s%d, 0" % sCnt, "s_cbranch_scc1 L_loop")),
                     Item("", "mark", mark="loop:e%d" % c)] + sc.pre[e]
    sc.add_head(istart[0], I("s_mov_b32 s%d, %d" % (sCnt, NIT)), 4)
    BL = bstart[NKV - 1]
    lines = []
    swap_reduce(lines.append, "v_add_f32", [vL, vL + 1], [vT2, vT3], 16)
    swap_reduce(lines.append, "v_add_f32", [vL, vL + 1], [vT2, vT3], 32)
    lines += ["v_rcp_f32 v%d, v%d" % (vRinv, vL), "v_rcp_f32 v%d, v%d" % (vRinv + 1, vL + 1), "s_nop 0"]
    ops = [Op(I(multi(*lines)), 8, BL + 2, BL + 3)]
    for ks in range(8):
        for qb in range(2):
            T = 208 + 8 * qb
            e = BL + 4 * ks + 3 + 3
            firstuse = WO0 + (ks & 3) + 4 * qb + (32 if ks >= 4 else 0)
            dl = max(firstuse - 3, e)
            ic = []
            for h in range(2):
                for d in range(4):
                    ic.append("v_accvgpr_read_b32 v%d, a%d" % (T + 4 * h + d, 16 * ks + 8 * h + 4 * qb + d))
            for d in range(8):
                ic.append("v_mul_f32 v%d, v%d, v%d" % (T + d, T + d, vRinv + qb))
            for d in range(4):
                ic.append("v_cvt_pk_bf16_f32 v%d, v%d, v%d" % (OF + 8 * ks + 4 * qb + d, T + 2 * d, T + 2 * d + 1))
            ops += [(e, dl, ks, qb, ic)]
    o2 = [ops[0]]
    for e, dl, ks, qb, ic in sorted(ops[1:], key=lambda x: (x[1], x[0])):
        o2 += [Op(I(t), 4, e, dl) for t in ic]
    sc.add_stream(o2)
    ops = []
    for s2 in range(4):
        hf = s2 >> 1
        for qb in range(2):
            T = 240 + 8 * qb
            e = f1_end[ACC1 + 32 * hf + 8 * (2 * (s2 & 1) + 1) + 4 * qb] + 3
            firstuse = F2 + s2 + 4 * qb
            dl = firstuse - 3
            assert e <= dl
            src = [ACC1 + 32 * hf + 8 * (2 * (s2 & 1) + h) + 4 * qb + d for h in range(2) for d in range(4)]
            o = []
            for d in range(8): o.append(("v_mul_f32 v%d, %s, v%d" % (T + d, fhex(-LOG2E), src[d]), 4))
            for d in range(8): o.append(("v_exp_f32 v%d, v%d" % (T + d, T + d), 8))
            for d in range(8): o.append(("v_add_f32 v%d, 1.0, v%d" % (T + d, T + d), 4))
            for d in range(8): o.append(("v_rcp_f32 v%d, v%d" % (T + d, T + d), 8))
            for d in range(8): o.append(("v_mul_f32 v%d, v%d, v%d" % (T + d, T + d, src[d]), 4))
            for d in range(4): o.append(("v_cvt_pk_bf16_f32 v%d, v%d, v%d" % (FF + 8 * s2 + 4 * qb + d, T + 2 * d, T + 2 * d + 1), 4))
            if dl > firstuse - 3: o.append(("s_nop 1", 4))
            ops.append((dl, e, o))
    o2 = []
    for dl, e, o in sorted(ops, key=lambda x: (x[1], x[0])):
        o2 += [Op(I(t), c, e, dl) for t, c in o]
    mind = 10**9
    for op in reversed(o2):
        mind = min(mind, op.deadline); op.deadline = max(mind, op.earliest)
    sc.add_stream(o2)

    def flag_store(q, ph):
        q.e("s_cmp_lg_u32 s%d, 0" % sW)
        q.e("s_cbranch_scc1 L_nf%d" % ph)
        q.e("s_mov_b64 exec, 1")
        q.e("v_mov_b32 v%d, 1" % vT0)
        q.e("v_mov_b32 v%d, %d" % (vT1, 2048 * ph))
        q.e("buffer_store_dword v%d, v%d, s[%d:%d], s%d offen sc1" % (vT0, vT1, sWS, sWS + 3, sTG))
        q.e("s_mov_b64 exec, -1")
        q.e("L_nf%d:" % ph)
    def flag_poll(ph, n, withz):
        p.e("v_lshlrev_b32 v%d, 2, v%d" % (vT0, vLane))
        p.e("v_add_u32 v%d, %d, v%d" % (vT0, 2048 * ph, vT0))
        p.e("s_and_b32 s61, s%d, 0xffffff80" % sTG)
        p.e("v_mov_b32 v%d, 128" % vT2)
        loads = ["buffer_load_dword v%d, v%d, s[%d:%d], s61 offen sc1" % (vT1, vT0, sWS, sWS + 3)]
        cond = ["v_cmp_eq_u32 vcc, 1, v%d" % vT1]
        if withz:
            loads = ["buffer_load_dword v%d, v%d, s[%d:%d], 0 offen sc1" % (vT3, vT2, sDB, sDB + 3), "s_waitcnt vmcnt(0)"] + loads
            cond += ["v_cmp_le_u32 s[60:61], s%d, v%d" % (sVo, vT3), "s_and_b64 vcc, vcc, s[60:61]", "s_and_b32 s61, s%d, 0xffffff80" % sTG]
            p.e("s_mov_b32 s%d, 256" % sVo)
        cond += ["s_cmp_eq_u64 vcc, exec"]
        poll("f%d" % ph, loads, cond, (1 << n) - 1)
    def reduce_phase(final):
        npart = 14 if final else 16
        if not final:
            p.e("v_lshrrev_b32 v%d, 5, v0" % vT0)
            p.e("v_and_b32 v%d, 3, v0" % vT1)
            p.e("v_bfe_u32 v%d, v0, 2, 3" % vT2)
            p.e("v_lshlrev_b32 v%d, 10, v%d" % (vRP, vT2))
            p.e("v_lshl_add_u32 v%d, v%d, 6, v%d" % (vRP, vT0, vRP))
            p.e("v_lshl_add_u32 v%d, v%d, 4, v%d" % (vRP, vT1, vRP))
            p.e("v_mul_u32_u24 v%d, 896, v%d" % (vRX, vT0))
            p.e("v_lshl_add_u32 v%d, v%d, 7, v%d" % (vRX, vT2, vRX))
            p.e("v_lshl_add_u32 v%d, v%d, 3, v%d" % (vRX, vT1, vRX))
            p.e("v_lshlrev_b32 v%d, 8, v%d" % (vRM, vT2))
            p.e("v_lshl_add_u32 v%d, v%d, 4, v%d" % (vRM, vT1, vRM))
            p.e("v_lshlrev_b32 v%d, 12, v%d" % (vRH, vT2))
            p.e("v_lshl_add_u32 v%d, v%d, 8, v%d" % (vRH, vT1, vRH))
            p.e("v_lshl_add_u32 v%d, v%d, 4, v%d" % (vRH, vT0, vRH))
            p.e("v_cmp_eq_u32 vcc, 7, v%d" % vT2)
            p.e("v_mov_b32 v%d, 0x%x" % (vT3, OOB))
            p.e("s_nop 0")
            for r in (vRP, vRX, vRM, vRH):
                p.e("v_cndmask_b32 v%d, v%d, v%d, vcc" % (r, r, vT3))
            p.e("s_lshl_b32 s%d, s%d, 4" % (sKo, sQb))
            p.e("s_add_u32 s%d, s%d, s%d" % (sKo, sKo, sHead))
            p.e("s_mul_i32 s%d, s%d, 7168" % (sKo, sKo))
            p.e("s_mov_b32 s%d, 0x3f80" % sOne)
            p.e("s_mov_b32 s%d, 0x3f800000" % sOneH)
            XV = 192
            xid = [p.vm("buffer_load_dwordx2 %s, v%d, s[%d:%d], s%d offen offset:%d" % (vr(XV + 2 * i, 2), vRX, sX, sX + 3, sKo, 32 * i)) for i in range(4)]
            st("woend")
            p.drain("s_waitcnt vmcnt(0)")
            st("wodrain")
            p.e("s_barrier")
            flag_store(p, 0)
            flag_poll(0, 16, True)
        else:
            st("fend")
            p.drain("s_waitcnt vmcnt(0)")
            p.e("s_barrier")
            flag_store(p, 2)
            p.e("L_r2:")
            p.drain("s_waitcnt vmcnt(0) lgkmcnt(0)")
            flag_poll(2, 14, False)
        st("r2flag" if final else "r1flag")
        PB = 64
        p.e("s_add_u32 s60, s%d, 0x%x" % (sKo, WS_P2 if final else WS_P1))
        pid = []
        for i in range(npart):
            for k in range(2):
                pid.append(p.vm("buffer_load_dwordx4 %s, v%d, s[%d:%d], s60 offen offset:%d%s" % (vr(PB + 8 * i + 4 * k, 4), vRP, sWS, sWS + 3, 512 * k, cfg.LD)))
            p.e("s_add_u32 s60, s60, %d" % ACT)
        G_, C1_, SB_ = 200, 216, 232
        def pload(dst, off):
            p.e("s_mov_b32 s61, %d" % off)
            return [p.vm("buffer_load_dwordx4 %s, v%d, s[%d:%d], s61 offen offset:%d%s" % (vr(dst + 4 * i, 4), vRM, sWS, sWS + 3, 64 * i, cfg.LD)) for i in range(4)]
        gid = pload(G_, WS_GB if final else WS_GA)
        if not final:
            cid = pload(C1_, WS_C1B); sid = pload(SB_, WS_SB)
        A = 2
        A = 2 if final else 248 - 0
        if not final:
            A = None
        ACCR = list(range(2, 18)) if final else None
        if not final:
            ACCR = [57, 58, 59, 60, 61, 62, 63, 248, 249, 250, 251, 252, 253, 254, 255, vChk]
        for a in ACCR:
            p.e("v_mov_b32 v%d, 0" % a)
        for i in range(npart):
            for k in range(2):
                for d in range(4):
                    src = PB + 8 * i + 4 * k + d
                    a0, a1 = ACCR[8 * k + 2 * d], ACCR[8 * k + 2 * d + 1]
                    p.e("v_dot2_f32_bf16 v%d, v%d, s%d, v%d" % (a0, src, sOne, a0), needs=[pid[2 * i + k]] if d == 0 else ())
                    p.e("v_dot2_f32_bf16 v%d, v%d, s%d, v%d" % (a1, src, sOneH, a1))
        p.e("s_nop 2")
        st("r2sum" if final else "r1sum")
        TM = list(range(64, 72))
        round_pairs(p, ACCR, TM)
        for i in range(16):
            p.e("v_mul_f32 v%d, v%d, v%d" % (ACCR[i], ACCR[i], G_ + i), needs=gid if i == 0 else ())
        round_pairs(p, ACCR, TM)
        XS = vX1 if final else XV
        for d in range(8):
            unpack(p, 72, 73, XS + d)
            p.e("v_add_f32 v%d, v%d, v72" % (ACCR[2 * d], ACCR[2 * d]))
            p.e("v_add_f32 v%d, v%d, v73" % (ACCR[2 * d + 1], ACCR[2 * d + 1]))
        for d in range(8):
            p.e("v_cvt_pk_bf16_f32 v%d, v%d, v%d" % (vX1 + d, ACCR[2 * d], ACCR[2 * d + 1]))
        if final:
            for i in range(4):
                p.vm("buffer_store_dwordx2 %s, v%d, s[%d:%d], s%d offen offset:%d" % (vr(vX1 + 2 * i, 2), vRX, sOUT, sOUT + 3, sKo, 32 * i))
            return
        for d in range(8):
            unpack(p, ACCR[2 * d], ACCR[2 * d + 1], vX1 + d)
        def red32(v):
            dpp_add(p.e, [v], "quad_perm:[1,0,3,2]")
            dpp_add(p.e, [v], "quad_perm:[2,3,0,1]")
            dpp_add(p.e, [v], "row_half_mirror")
            dpp_add(p.e, [v], "row_mirror")
            swap_reduce(p.e, "v_add_f32", [v], [75], 16)
            p.e("v_mul_f32 v%d, %s, v%d" % (v, fhex(1.0 / 448), v))
        p.e("v_add_f32 v76, v%d, v%d" % (ACCR[0], ACCR[1]))
        p.e("v_add_f32 v77, v%d, v%d" % (ACCR[2], ACCR[3]))
        for i in range(4, 16, 2):
            p.e("v_add_f32 v76, v76, v%d" % ACCR[i])
            p.e("v_add_f32 v77, v77, v%d" % ACCR[i + 1])
        p.e("v_add_f32 v76, v76, v77")
        red32(76)
        p.e("v_mov_b32 v77, 0")
        p.e("v_mov_b32 v78, 0")
        for i in range(0, 16, 2):
            p.e("v_sub_f32 v72, v%d, v76" % ACCR[i])
            p.e("v_sub_f32 v73, v%d, v76" % ACCR[i + 1])
            p.e("v_fmac_f32 v77, v72, v72")
            p.e("v_fmac_f32 v78, v73, v73")
        p.e("v_add_f32 v77, v77, v78")
        p.e("v_cmp_ne_u32 vcc, 0x%x, v%d" % (OOB, vRP))
        p.e("s_nop 1")
        p.e("v_cndmask_b32 v77, 0, v77, vcc")
        red32(77)
        ln_finish(p, 76, 77, 78)
        for i in range(16):
            p.e("v_sub_f32 v%d, v%d, v76" % (ACCR[i], ACCR[i]))
        round_pairs(p, ACCR, TM)
        for i in range(16):
            p.e("v_mul_f32 v%d, v%d, v78" % (ACCR[i], ACCR[i]))
        round_pairs(p, ACCR, TM)
        for i in range(16):
            p.e("v_mul_f32 v%d, v%d, v%d" % (ACCR[i], ACCR[i], C1_ + i), needs=cid if i == 0 else ())
        round_pairs(p, ACCR, TM)
        for i in range(16):
            p.e("v_add_f32 v%d, v%d, v%d" % (ACCR[i], ACCR[i], SB_ + i), needs=sid if i == 0 else ())
        for d in range(8):
            p.e("v_cvt_pk_bf16_f32 v%d, v%d, v%d" % (64 + d, ACCR[2 * d], ACCR[2 * d + 1]))
        p.e("s_lshl_b32 s60, s%d, 2" % sQb)
        p.e("s_lshr_b32 s61, s%d, 2" % sHead)
        p.e("s_add_u32 s60, s60, s61")
        p.e("s_mul_i32 s60, s60, 28672")
        p.e("s_bfe_u32 s61, s%d, 0x10001" % sHead)
        p.e("s_lshl_b32 s61, s61, 10")
        p.e("s_add_u32 s60, s60, s61")
        p.e("s_and_b32 s61, s%d, 1" % sHead)
        p.e("s_lshl_b32 s61, s61, 7")
        p.e("s_add_u32 s60, s60, s61")
        p.e("s_add_u32 s60, s60, 0x%x" % WS_H2)
        for k in range(2):
            p.vm("buffer_store_dwordx4 %s, v%d, s[%d:%d], s60 offen offset:%d%s" % (vr(64 + 4 * k, 4), vRH, sWS, sWS + 3, 2048 * k, cfg.ST))
        p.e("s_lshl_b32 s61, s%d, 2" % sQb)
        p.e("s_add_u32 s61, s61, s%d" % sW)
        p.e("s_mul_i32 s61, s61, 28672")
        p.e("s_add_u32 s%d, s61, 0x%x" % (sO, WS_H2))
        p.e("s_mul_i32 s60, s%d, %d" % (sHead, ACT))
        p.e("s_add_u32 s%d, s61, s60" % sPo)
        p.e("s_add_u32 s%d, s%d, 0x%x" % (sPo, sPo, WS_P2))
        st("h2st")
        p.drain("s_waitcnt vmcnt(0)")
        p.e("s_barrier")
        flag_store(p, 1)
        p.e("s_cmp_ge_u32 s%d, 14" % sHead)
        p.e("s_cbranch_scc1 L_r2")
        flag_poll(1, 16, False)
        st("h2flag")
        for n_, it in enumerate(hitems):
            p.add(it)
            if n_ % 4 == 3:
                p.e("s_add_u32 s%d, s%d, 4096" % (sO, sO))
    def capture(fn):
        saved = p.items
        p.items = []
        fn()
        out, p.items = p.items, saved
        return out
    for it in capture(lambda: reduce_phase(False)):
        sc.add_pre(F1, it)
    for it in capture(lambda: reduce_phase(True)):
        sc.add_pre(sc.n(), it)
    ring.finish(cfg.R, first_needs=[prm_w], hard_dl=[F1 - 1])
    for nm, gp in (("q0", 0), ("a0", A0), ("loop0", istart[1] + 40), ("loop1", istart[2 + 2 * NCOPY] + 40), ("wo0", WO0), ("f1s", F1), ("f2s", F2)):
        if want(nm):
            sc.add_head(gp, stamp(nm))
    sc.emit()
    if cfg.stamps:
        p.e("s_waitcnt vmcnt(0)")
        p.add(stamp("end"))
        p.e("s_waitcnt lgkmcnt(0)")
        p.e("s_lshl_b32 s60, s2, 2")
        p.e("s_add_u32 s60, s60, s%d" % sW)
        p.e("s_lshl_b32 s60, s60, 7")
        p.e("s_add_u32 s60, s60, 0x%x" % WS_STAMP)
        p.e("v_mov_b32 v0, 0")
        for q in range(len(stamp_names)):
            r = stamp_pool[q]
            p.e("v_mov_b32 v4, s%d" % r)
            p.e("v_mov_b32 v5, s%d" % (r + 1))
            p.e("buffer_store_dwordx2 v[4:5], v0, s[%d:%d], s60 offen offset:%d" % (sWS, sWS + 3, 8 * q))
            p.e("s_nop 2")
        cfg.stamp_names = stamp_names
    p.e("s_endpgm")
    for tag, par in tramps:
        p.e("L_tr_%s:" % tag)
        p.e("s_call_b64 s[%d:%d], L_rare%d" % (sRet, sRet + 1, par))
        p.e("s_branch L_bk_%s" % tag)
    for par in range(2):
        Sc, Sn = S[par], S[par ^ 1]
        p.e("L_rare%d:" % par)
        p.e("s_nop 15")
        maxfix(p.e, Sc)
        for qb in range(2):
            p.e("v_max_f32 v%d, 0, v%d" % (vT0 + qb, vT0 + qb))
            p.e("v_exp_f32 v%d, -v%d" % (vT2 + qb, vT0 + qb))
        for qb in range(2):
            for i in range(4):
                p.e("v_sub_f32 v%d, v%d, v%d" % (NEGM + 4 * qb + i, NEGM + 4 * qb + i, vT0 + qb))
                for kb in range(2):
                    for Sx in (Sn, Sc):
                        r = Sx + 8 * kb + 4 * qb + i
                        p.e("v_sub_f32 v%d, v%d, v%d" % (r, r, vT0 + qb))
            p.e("v_mul_f32 v%d, v%d, v%d" % (vL + qb, vL + qb, vT2 + qb))
        for b in range(0, 128, 8):
            for d in range(8):
                p.e("v_accvgpr_read_b32 v%d, a%d" % (E + d, b + d))
            for d in range(8):
                p.e("v_mul_f32 v%d, v%d, v%d" % (E + d, E + d, vT2 + (d >> 2)))
            for d in range(8):
                p.e("v_accvgpr_write_b32 a%d, v%d" % (b + d, E + d))
        for t, c in sm_list(par, False):
            p.e(t)
        p.e("s_nop 1")
        p.e("s_setpc_b64 s[%d:%d]" % (sRet, sRet + 1))
    p.e("L_end:")
    res = p.resolve()
    res = fold_loop(res, "loop", NCOPY)
    if cfg.VERBOSE:
        b = istart[2]
        ld = [sc.load[x] for x in range(b, b + 64)]
        print("loop gap loads:", ld, "sum", sum(ld), "over", sum(max(0, x - 8) for x in ld), "maxl", p.maxl, "maxv", p.maxv)
        for nm, a, b_ in (("qproj", 32, 96), ("wo", WO0 + 64, WO0 + 128), ("f1", F1 + 32, F1 + 96), ("f2", F2 + 32, F2 + 96)):
            ld = [sc.load[x] for x in range(a, b_)]
            print(nm, ld, "over", sum(max(0, x - 8) for x in ld))
    return render(res), 256 + FR + 4 * cfg.NPOOL, 256, LDS_BYTES

def header():
    ref = open("cdna_kernels/%s.s.ref" % NAME).read().splitlines()
    out = []
    for l in ref:
        if "@launch" in l:
            continue
        if not l.startswith(";"):
            break
        out.append(l)
    return "\n".join(out) + "\n"

def main(outpath):
    body, nv, ao, lds = gen()
    txt = header()
    if cfg.stamps:
        txt += "; STAMPS " + " ".join(cfg.stamp_names) + "\n"
    txt += "; @launch grid=(256,1,1) block=(256,1,1) lds=%d\n" % lds
    txt += '.amdgcn_target "amdgcn-amd-amdhsa--gfx950"\n.text\n'
    txt += kernel_text(KN, body, nv, ao)
    txt += '.section .rodata,"a"\n.p2align 6\n' + kernel_desc(KN, nv, ao, 102)
    open(outpath, "w").write(txt)
    print("wrote", outpath, len(txt), "bytes")

if __name__ == "__main__":
    out = sys.argv[1] if len(sys.argv) > 1 else "f.s"
    for a in sys.argv[2:]:
        k, v = a.split("=", 1)
        setattr(cfg, k, eval(v))
    main(out)
```
